```python
import torch

def _softmax(x, axis=-1):
    return torch.softmax(x, dim=axis)

def _gelu(x):
    return torch.nn.functional.gelu(x, approximate='tanh')

def _silu(x):
    return torch.nn.functional.silu(x)

def _sigmoid(x):
    return torch.sigmoid(x)

def _layernorm(x, axis=-1, eps=1e-05):
    m = x.mean(dim=axis, keepdim=True)
    v = x.var(dim=axis, keepdim=True, unbiased=False)
    return (x - m) / torch.sqrt(v + eps)

def _scatter_add(tgt, idx, src, axis=0):
    return tgt.clone().index_add_(axis, idx, src)

def _segment_sum(src, seg, n):
    out = torch.zeros((n,) + src.shape[1:], dtype=src.dtype)
    return out.index_add_(0, seg, src)

def _pad(x, pw):
    flat = tuple((v for pair in reversed(pw) for v in pair))
    return torch.nn.functional.pad(x, flat)
kernel_name = 'adaLN_cond__grouped_kv_mqa__glu_gated_reglu__prompt'

def setup_inputs():

    _w = lambda a: (lambda t: t.to(torch.bfloat16) if t.is_floating_point() else t)(torch.as_tensor(a))

    def _A_setup():
        B, S, D, H = (1, 2048, 1024, 32)
        Dh = D // H
        return {'x': _w((lambda *s: torch.randn(*s, dtype=torch.bfloat16) * 0.05)(B, S, D)), 'wq': _w((lambda *s: torch.randn(*s, dtype=torch.bfloat16) * 0.05)(D, H * Dh)), 'wk': _w((lambda *s: torch.randn(*s, dtype=torch.bfloat16) * 0.05)(D, Dh)), 'wv': _w((lambda *s: torch.randn(*s, dtype=torch.bfloat16) * 0.05)(D, Dh)), 'wo': _w((lambda *s: torch.randn(*s, dtype=torch.bfloat16) * 0.05)(H * Dh, D))}
    _A_in = _A_setup()

    def _B_setup():
        B, S, D, F = (1, 2048, 1024, 3584)
        return {'x': _w((lambda *s: torch.randn(*s, dtype=torch.bfloat16) * 0.05)(B, S, D)), 'W_gate': _w((lambda *s: torch.randn(*s, dtype=torch.bfloat16) * 0.8)(D, F) * (2.0 / D) ** 0.5), 'W_up': _w((lambda *s: torch.randn(*s, dtype=torch.bfloat16) * 0.8)(D, F) * (2.0 / D) ** 0.5), 'W_down': _w((lambda *s: torch.randn(*s, dtype=torch.bfloat16) * 0.8)(F, D) * (1.0 / F) ** 0.5)}
    _B_in = _B_setup()
    return {'A_x': _A_in['x'], 'A_wq': _A_in['wq'], 'A_wk': _A_in['wk'], 'A_wv': _A_in['wv'], 'A_wo': _A_in['wo'], 'B_x': _B_in['x'], 'B_W_gate': _B_in['W_gate'], 'B_W_up': _B_in['W_up'], 'B_W_down': _B_in['W_down'], 'c': _w((lambda *s: torch.randn(*s, dtype=torch.bfloat16) * 0.1)(1, 1024) * 8.0), 'w_mod': _w((lambda *s: torch.randn(*s, dtype=torch.bfloat16) * 0.1)(1024, 6 * 1024) * 1024 ** (-0.5) * 8.0)}

def reference(A_x, A_wq, A_wk, A_wv, A_wo, B_x, B_W_gate, B_W_up, B_W_down, c, w_mod):

    def _A_ref(x, wq, wk, wv, wo):
        B, S, D = x.shape
        H = 32
        Dh = D // H
        q = (lambda x, *d: x.permute(*d))((x @ wq).reshape(B, S, H, Dh), 0, 2, 1, 3)
        k = x @ wk
        v = x @ wv
        scores = torch.einsum('bhqd,bkd->bhqk', q, k) * Dh ** (-0.5)
        p = _softmax(scores, axis=-1)
        o = torch.einsum('bhqk,bkd->bhqd', p, v)
        return (lambda x, *d: x.permute(*d))(o, 0, 2, 1, 3).reshape(B, S, H * Dh) @ wo

    def _B_ref(x, W_gate, W_up, W_down):
        gate = torch.einsum('bsd,df->bsf', x, W_gate)
        up = torch.einsum('bsd,df->bsf', x, W_up)
        gate = gate * (lambda x, dt: x.to(dt))(gate > 0, gate.dtype)
        h = gate * up
        return torch.einsum('bsf,fd->bsd', h, W_down)
    x = A_x
    mod = (_silu(c) @ w_mod).reshape(c.shape[0], 6, 1, -1)
    sa, ca, ga, sb, cb, gb = (mod[:, 0].clone(), mod[:, 1].clone(), mod[:, 2].clone(), mod[:, 3].clone(), mod[:, 4].clone(), mod[:, 5].clone())
    h = _layernorm(x, axis=-1) * (1 + ca) + sa
    x = x + ga * _A_ref(h, A_wq, A_wk, A_wv, A_wo)
    h = _layernorm(x, axis=-1) * (1 + cb) + sb
    x = x + gb * _B_ref(h, B_W_gate, B_W_up, B_W_down)
    return x
```

```python
from fw import *
from layout import *

def srd(kb, s, ptr_s, nbytes, off=0):
    if off:
        kb(f"s_add_u32 s{s}, s{ptr_s}, {off}")
        kb(f"s_addc_u32 s{s+1}, s{ptr_s+1}, 0")
        kb(f"s_and_b32 s{s+1}, s{s+1}, 0xffff")
    else:
        kb(f"s_mov_b32 s{s}, s{ptr_s}")
        kb(f"s_and_b32 s{s+1}, s{ptr_s+1}, 0xffff")
    kb(f"s_mov_b32 s{s+2}, {nbytes}")
    kb(f"s_mov_b32 s{s+3}, 0x00020000")

def xhalf_sum(kb, v, tmp):
    kb(f"v_mov_b32 v{tmp}, v{v}")
    kb(f"v_permlane32_swap_b32 v{v}, v{tmp}")
    kb(f"v_add_f32 v{v}, v{v}, v{tmp}")

def xhalf_max(kb, v, tmp):
    kb(f"v_mov_b32 v{tmp}, v{v}")
    kb(f"v_permlane32_swap_b32 v{v}, v{tmp}")
    kb(f"v_max_f32 v{v}, v{v}, v{tmp}")

def wave_max(kb, v, tmp):
    for r in (1, 2, 4, 8):
        kb(f"v_max_f32_dpp v{v}, v{v}, v{v} row_ror:{r} row_mask:0xf bank_mask:0xf")
    kb(f"v_mov_b32 v{tmp}, v{v}")
    kb(f"v_permlane16_swap_b32 v{v}, v{tmp}")
    kb(f"v_max_f32 v{v}, v{v}, v{tmp}")
    xhalf_max(kb, v, tmp)

def round_bf16_keep_f32(kb, v, tmp):
    kb(f"v_cvt_pk_bf16_f32 v{v}, v{v}, v{v}")
    kb(f"v_and_b32 v{v}, 0xffff0000, v{v}")

import os
STAMPS = os.environ.get("STAMPS", "") != ""
def stamp(kb, i, real=False):
    if STAMPS:
        kb(f"{'s_memrealtime' if real else 's_memtime'} s[{64+2*i}:{65+2*i}]")
def stamp_flush(kb, n, wave_s, vtmp=20, wg=0):
    if not STAMPS: return
    L = kb.newlabel("nostamp")
    wg = int(os.environ.get("STAMPWG", wg))
    kb(f"s_cmp_lg_u32 s2, {wg}")
    kb(f"s_cbranch_scc1 {L}")
    kb(f"s_load_dwordx2 s[62:63], s[0:1], {A_DBG}")
    kb("s_waitcnt vmcnt(0) lgkmcnt(0)")
    for i in range(n):
        kb(f"v_writelane_b32 v{vtmp}, s{64+2*i}, {i}")
    kb(f"v_and_b32 v{vtmp+1}, 63, v0")
    kb(f"v_lshlrev_b32 v{vtmp+1}, 2, v{vtmp+1}")
    kb(f"s_lshl_b32 s61, s{wave_s}, 6")
    kb(f"v_add_u32 v{vtmp+1}, s61, v{vtmp+1}")
    kb(f"v_and_b32 v{vtmp+2}, 63, v0")
    kb(f"v_cmp_gt_u32 vcc, {n}, v{vtmp+2}")
    kb(f"s_and_saveexec_b64 s[60:61], vcc")
    kb(f"global_store_dword v{vtmp+1}, v{vtmp}, s[62:63]")
    kb(f"s_mov_b64 exec, s[60:61]")
    kb.label(L)
```

```python
import re

REG_RE = re.compile(r'\b([vas])\[(\d+):(\d+)\]|\b([vas])(\d+)\b|\b(vcc|exec|m0|scc)\b')

def regs_of(tok):
    tok = tok.strip()
    out = set()
    m = re.fullmatch(r'-?\|?([vas])\[(\d+):(\d+)\]\|?', tok)
    if m:
        k, a, b = m.group(1), int(m.group(2)), int(m.group(3))
        return {(k, i) for i in range(a, b+1)}
    m = re.fullmatch(r'-?\|?(?:abs\()?([vas])(\d+)\)?\|?', tok)
    if m:
        return {(m.group(1), int(m.group(2)))}
    if tok in ('vcc', 'vcc_lo', 'vcc_hi'):
        return {('s', 106), ('s', 107)}
    if tok in ('exec', 'exec_lo', 'exec_hi'):
        return {('x', 0)}
    if tok == 'm0':
        return {('m', 0)}
    return set()

TRANS = ('v_exp_f32', 'v_log_f32', 'v_rcp_f32', 'v_rsq_f32', 'v_sqrt_f32', 'v_sin_f32', 'v_cos_f32', 'v_rcp_iflag_f32',
         'v_exp_f16', 'v_log_f16', 'v_rcp_f16', 'v_rsq_f16', 'v_sqrt_f16')

class Ins:
    __slots__ = ('text', 'op', 'kind', 'dst', 'src', 'passes', 'srcC', 'nws', 'wide_store', 'lds_dma', 'is_trans', 'dpp', 'srcAB', 'comment')
    def __init__(self, text):
        self.text = text
        t = text.split(';')[0].strip()
        self.op = t.split()[0] if t else ''
        rest = t[len(self.op):].strip()
        ops = [o.strip() for o in rest.split(',')] if rest else []
        mods = ''
        if ops:
            last = ops[-1].split(None, 1)
            if len(last) > 1 and not last[0].endswith('('):
                ops[-1] = last[0]; mods = last[1]
        self.dst = set(); self.src = set(); self.passes = 0; self.srcC = set(); self.srcAB = set()
        self.nws = 1; self.wide_store = False; self.lds_dma = False; self.is_trans = False
        self.dpp = ('dpp' in self.op) or ('row_' in mods) or ('quad_perm' in mods)
        op = self.op
        R = [regs_of(o) for o in ops]
        allr = lambda lst: set().union(*lst) if lst else set()
        if op == 's_nop':
            self.kind = 'nop'; self.nws = int(ops[0], 0) + 1
        elif op.startswith('v_mfma'):
            self.kind = 'mfma'
            self.dst = R[0]; self.srcAB = R[1] | R[2]; self.srcC = R[3] if len(R) > 3 else set()
            self.src = self.srcAB | self.srcC
            self.passes = 8 if '32x32x16' in op or '32x32x8' in op else 4
            assert '32x32x16' in op or '16x16x32' in op, op
        elif op.startswith('v_'):
            self.kind = 'valu'
            base = op.replace('_e32', '').replace('_e64', '').replace('_sdwa', '').replace('_dpp', '')
            self.is_trans = base in TRANS
            if base.startswith('v_cmp'):
                self.dst = R[0]; self.src = allr(R[1:])
                if base.startswith('v_cmpx'): self.dst |= {('x', 0)}
            elif base.startswith('v_permlane') and 'swap' in base:
                self.dst = R[0] | R[1]; self.src = R[0] | R[1]
            elif base in ('v_add_co_u32', 'v_sub_co_u32', 'v_subrev_co_u32', 'v_addc_co_u32', 'v_subb_co_u32', 'v_mad_u64_u32', 'v_div_scale_f32'):
                self.dst = R[0] | R[1]; self.src = allr(R[2:])
            elif base in ('v_fmac_f32', 'v_dot2c_f32_bf16', 'v_pk_fmac_f16', 'v_writelane_b32', 'v_fmac_f16'):
                self.dst = R[0]; self.src = allr(R)
            else:
                self.dst = R[0]; self.src = allr(R[1:])
                if base == 'v_cndmask_b32' and len(R) == 3:
                    self.src |= regs_of('vcc')
                if 'UNUSED_PRESERVE' in mods or (self.dpp and base == 'v_mov_b32'):
                    self.src |= R[0]
        elif op.startswith('buffer_') or op.startswith('global_') or op.startswith('flat_'):
            self.kind = 'vmem'
            if op in ('buffer_inv', 'buffer_wbl2'):
                pass
            elif 'load' in op:
                if ' lds' in (' ' + mods) or 'load_lds' in op:
                    self.lds_dma = True; self.src = allr(R) | {('m', 0)}
                else:
                    self.dst = R[0]; self.src = allr(R[1:])
            elif 'store' in op:
                self.src = allr(R)
                self.wide_store = ('x3' in op or 'x4' in op)
            elif 'atomic' in op:
                self.src = allr(R)
                if 'sc0' in mods: self.dst = R[0]
            else:
                raise ValueError(text)
        elif op.startswith('ds_'):
            self.kind = 'ds'
            if 'read' in op or 'bpermute' in op or 'permute' in op or 'swizzle' in op:
                self.dst = R[0]; self.src = allr(R[1:])
            else:
                self.src = allr(R)
        elif op.startswith('s_'):
            self.kind = 'salu'
            if op.startswith('s_load') or op.startswith('s_buffer_load') or op in ('s_memtime', 's_memrealtime'):
                self.kind = 'smem'; self.dst = R[0] if R else set(); self.src = allr(R[1:])
            elif op.startswith('s_cmp') or op.startswith('s_bitcmp') or op.startswith('s_cbranch') or op in ('s_branch', 's_barrier', 's_waitcnt', 's_endpgm', 's_setprio', 's_sleep', 's_setreg_b32', 's_sethalt'):
                self.src = allr(R)
            else:
                self.dst = R[0] if R else set(); self.src = allr(R[1:])
                if 'saveexec' in op: self.dst |= {('x', 0)}
        else:
            raise ValueError("unknown instr: " + text)

    def store_data(self):
        t = self.text.split(';')[0].strip()
        rest = t[len(self.op):].strip()
        ops = [o.strip() for o in rest.split(',')]
        if self.op.startswith('buffer_'): return regs_of(ops[0])
        return regs_of(ops[1])

def vonly(s): return {r for r in s if r[0] in 'va'}
def sonly(s): return {r for r in s if r[0] == 's'}

def required_ws(p, c):
    need = 0
    pk, ck = p.kind, c.kind
    if pk == 'valu' and ck == 'mfma' and (vonly(p.dst) & c.src): need = max(need, 2)
    if pk == 'mfma':
        P = p.passes
        raw = {4: 8, 8: 12}[P]
        if ck in ('valu', 'vmem', 'ds'):
            if p.dst & (c.src | c.dst): need = max(need, raw)
            if ck == 'valu' and (p.srcC & c.dst): need = max(need, {4: 3, 8: 7}[P])
        if ck == 'mfma':
            if p.dst & c.srcAB: need = max(need, raw)
            if p.dst & c.srcC:
                if not (p.dst == c.srcC and p.passes == c.passes): need = max(need, {4: 6, 8: 10}[P])
            elif p.dst & c.dst:
                need = max(need, {4: 6, 8: 10}[P]) if p.dst != c.dst else max(need, 0)
    if pk == 'valu':
        if p.is_trans and ck in ('valu',) and not c.is_trans and (p.dst & c.src): need = max(need, 1)
        if p.is_trans and ck in ('vmem', 'ds') and (p.dst & c.src): need = max(need, 1)
        if ck == 'valu':
            b = c.op
            if (b.startswith('v_readlane') or b.startswith('v_readfirstlane')) and (vonly(p.dst) & c.src): need = max(need, 1)
            if b.startswith('v_permlane') and (vonly(p.dst) & c.src): need = max(need, 2)
            if c.dpp and (vonly(p.dst) & c.src): need = max(need, 2)
            if sonly(p.dst) & c.src:
                need = max(need, 4 if (b.startswith('v_readlane') or b.startswith('v_writelane')) else 2)
            if ('x', 0) in p.dst: need = max(need, 5 if c.dpp else 4 if (b.startswith('v_permlane') or b.startswith('v_readlane') or b.startswith('v_readfirstlane')) else 2)
        if ck == 'vmem' and (sonly(p.dst) & c.src): need = max(need, 5)
        if ck == 'mfma' and ('x', 0) in p.dst: need = max(need, 4)
        if ck == 'salu' and (sonly(p.dst) & c.src): need = max(need, 3)
        if ck == 'smem' and (sonly(p.dst) & c.src): need = max(need, 5)
    if pk == 'vmem' and p.wide_store:
        if c.dst & p.store_data(): need = max(need, 2 if ck == 'valu' else 1)
    if pk == 'salu' and ('m', 0) in p.dst and (c.lds_dma): need = max(need, 1)
    return need

class KB:
    def __init__(self, name):
        self.name = name
        self.items = []
        self.vmq = []
        self.lgq = []
        self.nlabel = 0
        self.issued = set()
    def raw(self, s): self.items.append(s)
    def label(self, l): self.items.append(l + ':')
    def newlabel(self, base='L'):
        self.nlabel += 1
        return f"{self.name}_{base}{self.nlabel}"
    def I(self, text, tag=None):
        ins = Ins(text)
        self.items.append(ins)
        if tag is not None: self.issued.add(tag)
        if ins.kind == 'vmem' and ins.op not in ('buffer_inv', 'buffer_wbl2'):
            self.vmq.append(tag)
        elif ins.kind == 'ds':
            self.lgq.append(tag)
        return ins
    def __call__(self, text, tag=None):
        for line in text.strip().split('\n'):
            line = line.strip()
            if not line or line.startswith(';'): continue
            if line.endswith(':'): self.label(line[:-1])
            else: self.I(line, tag)
    def wait_vm(self, tag, extra=''):
        assert tag in self.issued, f"wait_vm on never-issued tag {tag}"
        idx = max((i for i, t in enumerate(self.vmq) if t == tag), default=None)
        if idx is None: return
        n = len(self.vmq) - 1 - idx
        n = min(n, 63)
        self.I(f"s_waitcnt vmcnt({n})")
        self.vmq = self.vmq[len(self.vmq) - n:] if n else []
    def wait_lg(self, tag):
        assert tag in self.issued, f"wait_lg on never-issued tag {tag}"
        idx = max((i for i, t in enumerate(self.lgq) if t == tag), default=None)
        if idx is None: return
        n = len(self.lgq) - 1 - idx
        n = min(n, 15)
        self.I(f"s_waitcnt lgkmcnt({n})")
        self.lgq = self.lgq[len(self.lgq) - n:] if n else []
    def wait_all(self, vm=True, lg=True):
        s = []
        if vm: s.append("vmcnt(0)"); self.vmq = []
        if lg: s.append("lgkmcnt(0)"); self.lgq = []
        self.I("s_waitcnt " + " ".join(s))
    def wait_lg0(self): self.wait_all(vm=False, lg=True)
    def wait_vm0(self): self.wait_all(vm=True, lg=False)

    def finalize(self):
        out = []
        hist = []
        for it in self.items:
            if isinstance(it, str):
                out.append(it)
                continue
            need = 0
            dist = 0
            for p in reversed(hist):
                r = required_ws(p, it)
                if r > dist: need = max(need, r - dist)
                dist += p.nws
                if dist >= 20: break
            while need > 0:
                n = min(need, 16)
                nop = Ins(f"s_nop {n-1}")
                out.append(nop); hist.append(nop)
                need -= n
            out.append(it); hist.append(it)
            if len(hist) > 40: hist = hist[-40:]
        lines = []
        for it in out:
            lines.append(it if isinstance(it, str) else "  " + it.text)
        return "\n".join(lines) + "\n"

def kernel_text(kb, vgpr, sgpr=96, accum=None):
    if accum is None: accum = (vgpr + 3) // 4 * 4
    name = kb.name
    s = f""".globl {name}
.p2align 8
.type {name},@function
{name}:
"""
    s += kb.finalize()
    return s

def kd_text(name, vgpr, sgpr=96, accum=None):
    if accum is None: accum = (vgpr + 3) // 4 * 4
    return f""".p2align 6
.amdhsa_kernel {name}
  .amdhsa_next_free_vgpr {vgpr}
  .amdhsa_next_free_sgpr {sgpr}
  .amdhsa_accum_offset {accum}
  .amdhsa_group_segment_fixed_size 0
  .amdhsa_kernarg_size 112
  .amdhsa_user_sgpr_count 2
  .amdhsa_user_sgpr_kernarg_segment_ptr 1
  .amdhsa_system_sgpr_workgroup_id_x 1
.end_amdhsa_kernel
"""
```

```python
from common import *

K1_GEMV, K1_RT, K1_LN = 192, 68, 256
K1_GRID = K1_GEMV + K1_LN + K1_RT

def lane_reduce_bits345(kb, regs, tmps, op="v_add_f32"):
    for r in regs:
        kb(f"{op}_dpp v{r}, v{r}, v{r} row_ror:8 row_mask:0xf bank_mask:0xf")
    for r, t in zip(regs, tmps): kb(f"v_mov_b32 v{t}, v{r}")
    for r, t in zip(regs, tmps): kb(f"v_permlane16_swap_b32 v{r}, v{t}")
    for r, t in zip(regs, tmps): kb(f"{op} v{r}, v{r}, v{t}")
    for r, t in zip(regs, tmps): kb(f"v_mov_b32 v{t}, v{r}")
    for r, t in zip(regs, tmps): kb(f"v_permlane32_swap_b32 v{r}, v{t}")
    for r, t in zip(regs, tmps): kb(f"{op} v{r}, v{r}, v{t}")

def build_k1():
    kb = KB("k1_kernel")
    L_ln, L_rt, L_end = "k1_ln", "k1_rt", "k1_end"
    kb(f"""
s_cmp_ge_u32 s2, {K1_GRID}
s_cbranch_scc1 {L_end}
s_load_dwordx2 s[4:5], s[0:1], {A_WS}
v_and_b32 v1, 63, v0
v_lshrrev_b32 v2, 6, v0
s_nop 0
v_readfirstlane_b32 s3, v2
s_cmp_ge_u32 s2, {K1_GEMV + K1_RT}
s_cbranch_scc1 {L_ln}
s_cmp_ge_u32 s2, {K1_GEMV}
s_cbranch_scc1 {L_rt}
""")
    kb(f"""
s_load_dwordx2 s[6:7], s[0:1], {A_WMOD}
s_load_dwordx2 s[8:9], s[0:1], {A_C}
s_lshr_b32 s10, s2, 3
s_and_b32 s11, s2, 7
s_lshr_b32 s12, s10, 1
s_lshl_b32 s12, s12, 4
s_lshl_b32 s11, s11, 1
s_add_u32 s12, s12, s11
s_and_b32 s10, s10, 1
s_add_u32 s12, s12, s10
v_lshrrev_b32 v3, 2, v1
v_lshlrev_b32 v3, 4, v3
s_lshl_b32 s13, s3, 8
v_add_u32 v3, s13, v3
s_mov_b32 s14, 12288
v_mul_lo_u32 v4, v3, s14
v_and_b32 v5, 3, v1
v_lshlrev_b32 v5, 4, v5
s_lshl_b32 s15, s12, 6
v_add3_u32 v4, v4, v5, s15
v_lshlrev_b32 v6, 1, v3
s_waitcnt lgkmcnt(0)
""")
    srd(kb, 16, 6, 1024*6144*2)
    srd(kb, 20, 8, 2048)
    srd(kb, 24, 4, 6144*4, MODF)
    kb("buffer_load_dwordx4 v[8:11], v6, s[20:23], 0 offen", tag='c')
    kb("buffer_load_dwordx4 v[12:15], v6, s[20:23], 0 offen offset:16", tag='c')
    W = 32
    kb("s_mov_b32 s28, 0")
    for i in range(16):
        kb(f"buffer_load_dwordx4 v[{W+4*i}:{W+4*i+3}], v4, s[16:19], s28 offen", tag=('w', i))
        if i < 15: kb(f"s_add_u32 s28, s28, 12288")
    kb.wait_vm('c')
    LO, HI = 96, 112
    for j in range(16):
        d = 8 + j//2
        t = 28
        if j % 2 == 0: kb(f"v_lshlrev_b32 v{t}, 16, v{d}")
        else: kb(f"v_and_b32 v{t}, 0xffff0000, v{d}")
        kb(f"v_mul_f32 v29, 0xbfb8aa3b, v{t}")
        kb(f"v_exp_f32 v29, v29")
        kb(f"v_add_f32 v29, 1.0, v29")
        kb(f"v_rcp_f32 v29, v29")
        kb(f"v_mul_f32 v29, v{t}, v29")
        kb(f"v_cvt_pk_bf16_f32 v29, v29, v29")
        kb(f"v_and_b32 v{LO+j}, 0xffff, v29")
        kb(f"v_and_b32 v{HI+j}, 0xffff0000, v29")
    A = 16
    for j in range(8): kb(f"v_mov_b32 v{A+j}, 0")
    for i in range(16):
        kb.wait_vm(('w', i))
        for d in range(4):
            kb(f"v_dot2_f32_bf16 v{A+2*d}, v{W+4*i+d}, v{LO+i}, v{A+2*d}")
            kb(f"v_dot2_f32_bf16 v{A+2*d+1}, v{W+4*i+d}, v{HI+i}, v{A+2*d+1}")
    for j in range(8):
        kb(f"v_add_f32_dpp v{A+j}, v{A+j}, v{A+j} row_ror:4 row_mask:0xf bank_mask:0xf")
    lane_reduce_bits345(kb, [A+j for j in range(8)], [24+j for j in range(8)])
    kb(f"""
s_lshl_b32 s13, s3, 7
v_lshlrev_b32 v7, 1, v5
v_add_u32 v7, s13, v7
v_cmp_gt_u32 vcc, 4, v1
s_and_saveexec_b64 s[30:31], vcc
ds_write_b128 v7, v[16:19]
ds_write_b128 v7, v[20:23] offset:16
s_mov_b64 exec, s[30:31]
s_waitcnt lgkmcnt(0)
s_barrier
v_cmp_gt_u32 vcc, 32, v0
s_and_saveexec_b64 s[30:31], vcc
s_cbranch_execz {L_end}
v_lshlrev_b32 v7, 2, v0
""")
    for w in range(4):
        kb(f"ds_read_b32 v{16+w}, v7 offset:{128*w}")
    kb.wait_lg0()
    for w in range(1, 4):
        kb(f"v_add_f32 v16, v16, v{16+w}")
    round_bf16_keep_f32(kb, 16, 17)
    srd(kb, 20, 4, 6144*2, MODB)
    kb(f"""
s_lshl_b32 s15, s12, 7
buffer_store_dword v16, v7, s[24:27], s15 offen
s_lshr_b32 s16, s12, 5
s_cmp_eq_u32 s16, 1
s_cselect_b32 s17, 1.0, 0
s_cmp_eq_u32 s16, 4
s_cselect_b32 s17, 1.0, s17
v_add_f32 v17, s17, v16
v_cvt_pk_bf16_f32 v17, v17, v17
v_lshlrev_b32 v18, 1, v0
s_lshl_b32 s15, s12, 6
buffer_store_short v17, v18, s[20:23], s15 offen
s_endpgm
""")
    kb.vmq = []; kb.lgq = []
    kb.label(L_ln)
    kb(f"""
s_load_dwordx2 s[6:7], s[0:1], {A_X}
s_sub_u32 s10, s2, {K1_GEMV + K1_RT}
v_and_b32 v3, 7, v1
v_lshrrev_b32 v4, 3, v1
s_lshl_b32 s11, s10, 14
v_lshlrev_b32 v5, 11, v3
v_lshl_add_u32 v5, v4, 4, v5
s_lshl_b32 s12, s3, 9
s_add_u32 s11, s11, s12
s_waitcnt lgkmcnt(0)
""")
    srd(kb, 16, 6, 2048*1024*2)
    srd(kb, 24, 4, 4*MB, XNF)
    R = 32
    for i in range(4):
        kb(f"buffer_load_dwordx4 v[{R+4*i}:{R+4*i+3}], v5, s[16:19], s11 offen offset:{128*i}", tag=('x', i))
    kb(f"""
v_lshrrev_b32 v6, 1, v4
v_lshlrev_b32 v6, 10, v6
v_and_b32 v7, 1, v4
v_lshl_add_u32 v6, v7, 9, v6
s_and_b32 s13, s10, 3
s_lshl_b32 s13, s13, 7
v_lshl_add_u32 v6, v3, 4, v6
v_add_u32 v6, s13, v6
s_lshr_b32 s14, s10, 2
s_lshl_b32 s14, s14, 16
s_lshl_b32 s15, s3, 14
s_add_u32 s14, s14, s15
v_lshlrev_b32 v7, 4, v3
s_lshl_b32 s13, s3, 2
v_add_u32 v12, s13, v7
""")
    X = 64
    for i in range(4):
        kb.wait_vm(('x', i))
        for d in range(4):
            kb(f"v_lshlrev_b32 v{X+8*i+2*d}, 16, v{R+4*i+d}")
            kb(f"v_and_b32 v{X+8*i+2*d+1}, 0xffff0000, v{R+4*i+d}")
    for c in range(4): kb(f"v_add_f32 v{8+c}, v{X+c}, v{X+4+c}")
    for q in range(2, 8):
        for c in range(4): kb(f"v_add_f32 v{8+c}, v{8+c}, v{X+4*q+c}")
    kb("v_add_f32 v8, v8, v9\nv_add_f32 v10, v10, v11\nv_add_f32 v8, v8, v10")
    lane_reduce_bits345(kb, [8], [9])
    kb(f"""
ds_write_b32 v12, v8
s_waitcnt lgkmcnt(0)
s_barrier
ds_read_b128 v[16:19], v7
s_waitcnt lgkmcnt(0)
""")
    for w in range(1, 4): kb(f"v_add_f32 v16, v16, v{16+w}")
    kb("v_mul_f32 v16, 0x3a800000, v16")
    for q in range(32): kb(f"v_sub_f32 v{X+q}, v{X+q}, v16")
    for c in range(4): kb(f"v_mul_f32 v{8+c}, v{X+c}, v{X+c}")
    for q in range(1, 8):
        for c in range(4): kb(f"v_fmac_f32 v{8+c}, v{X+4*q+c}, v{X+4*q+c}")
    kb("v_add_f32 v8, v8, v9\nv_add_f32 v10, v10, v11\nv_add_f32 v8, v8, v10")
    lane_reduce_bits345(kb, [8], [9])
    kb(f"""
ds_write_b32 v12, v8 offset:128
s_waitcnt lgkmcnt(0)
s_barrier
ds_read_b128 v[16:19], v7 offset:128
s_waitcnt lgkmcnt(0)
""")
    for w in range(1, 4): kb(f"v_add_f32 v16, v16, v{16+w}")
    kb("v_mov_b32 v17, 0x3727c5ac")
    kb("v_fmac_f32 v17, 0x3a800000, v16")
    kb("v_rsq_f32 v17, v17")
    for q in range(32): kb(f"v_mul_f32 v{X+q}, v{X+q}, v17")
    for i in range(4):
        for d in range(4):
            kb(f"v_cvt_pk_bf16_f32 v{R+4*i+d}, v{X+8*i+2*d}, v{X+8*i+2*d+1}")
        kb(f"buffer_store_dwordx4 v[{R+4*i}:{R+4*i+3}], v6, s[24:27], s14 offen")
        if i < 3: kb("s_add_u32 s14, s14, 4096")
    kb("s_endpgm")
    kb.vmq = []; kb.lgq = []
    kb.label(L_rt)
    L_kv = "k1_rtkv"
    kb(f"""
s_sub_u32 s10, s2, {K1_GEMV}
s_lshl_b32 s10, s10, 2
s_add_u32 s10, s10, s3
s_mov_b32 s20, 0x05040100
s_mov_b32 s21, 0x07060302
s_cmp_ge_u32 s10, 256
s_cbranch_scc1 {L_kv}
s_load_dwordx2 s[6:7], s[0:1], {A_WQ}
s_lshr_b32 s11, s10, 4
s_and_b32 s12, s10, 15
v_and_b32 v3, 31, v1
v_lshrrev_b32 v4, 5, v1
v_lshlrev_b32 v5, 14, v4
v_lshl_add_u32 v5, v3, 2, v5
s_lshl_b32 s13, s11, 17
s_lshl_b32 s14, s12, 7
s_add_u32 s13, s13, s14
v_add_u32 v5, s13, v5
s_waitcnt lgkmcnt(0)
""")
    srd(kb, 16, 6, 1024*1024*2)
    srd(kb, 24, 4, 2*MB, WQT)
    D = 32
    for kbl in range(4):
        for j in range(8):
            row = 16*kbl + j
            if j % 2 == 0:
                kb(f"s_mov_b32 s22, {row*2048}")
            kb(f"buffer_load_dword v{D+8*kbl+j}, v5, s[16:19], s22 offen offset:{2048*(j%2)}", tag=('d', kbl))
    kb(f"""
v_lshrrev_b32 v6, 4, v3
v_lshlrev_b32 v6, 16, v6
v_lshlrev_b32 v7, 5, v3
v_and_b32 v7, 0x1ff, v7
v_lshl_add_u32 v7, v4, 9, v7
v_add_u32 v6, v6, v7
s_lshl_b32 s13, s12, 17
s_lshl_b32 s14, s11, 12
s_add_u32 s13, s13, s14
""")
    for kbl in range(4):
        kb.wait_vm(('d', kbl))
        O = 64 + 8*kbl
        for i in range(4):
            kb(f"v_perm_b32 v{O+i}, v{D+8*kbl+2*i+1}, v{D+8*kbl+2*i}, s20")
            kb(f"v_perm_b32 v{O+4+i}, v{D+8*kbl+2*i+1}, v{D+8*kbl+2*i}, s21")
        kb(f"buffer_store_dwordx4 v[{O}:{O+3}], v6, s[24:27], s13 offen offset:{1024*kbl}")
        kb(f"buffer_store_dwordx4 v[{O+4}:{O+7}], v6, s[24:27], s13 offen offset:{1024*kbl+16}")
    kb("s_endpgm")
    kb.vmq = []; kb.lgq = []
    kb.label(L_kv)
    kb(f"""
s_sub_u32 s10, s10, 256
s_lshr_b32 s11, s10, 3
s_and_b32 s12, s10, 7
s_load_dwordx2 s[6:7], s[0:1], {A_WK}
s_load_dwordx2 s[8:9], s[0:1], {A_WV}
v_and_b32 v3, 15, v1
v_lshrrev_b32 v4, 4, v1
v_lshlrev_b32 v5, 9, v4
v_lshl_add_u32 v5, v3, 2, v5
s_lshl_b32 s13, s12, 13
v_add_u32 v5, s13, v5
s_waitcnt lgkmcnt(0)
s_cmp_eq_u32 s11, 0
s_cselect_b32 s6, s6, s8
s_cselect_b32 s7, s7, s9
""")
    srd(kb, 16, 6, 1024*32*2)
    srd(kb, 24, 4, 131072, WKVT)
    kb("s_mov_b32 s22, 4096")
    for blk in range(4):
        for j in range(8):
            so = '0' if blk < 2 else 's22'
            kb(f"buffer_load_dword v{D+8*blk+j}, v5, s[16:19], {so} offen offset:{(32*(blk%2)+j)*64}", tag=('d', blk))
    kb(f"""
v_lshrrev_b32 v6, 1, v4
v_lshlrev_b32 v6, 10, v6
v_and_b32 v7, 1, v4
v_lshlrev_b32 v7, 9, v7
v_lshl_add_u32 v7, v3, 5, v7
v_add_u32 v6, v6, v7
s_lshl_b32 s13, s11, 16
s_lshl_b32 s14, s12, 13
s_add_u32 s13, s13, s14
""")
    for blk in range(4):
        kb.wait_vm(('d', blk))
        O = 64 + 8*blk
        for i in range(4):
            kb(f"v_perm_b32 v{O+i}, v{D+8*blk+2*i+1}, v{D+8*blk+2*i}, s20")
            kb(f"v_perm_b32 v{O+4+i}, v{D+8*blk+2*i+1}, v{D+8*blk+2*i}, s21")
        kb(f"buffer_store_dwordx4 v[{O}:{O+3}], v6, s[24:27], s13 offen offset:{2048*(blk%2)}")
        kb(f"buffer_store_dwordx4 v[{O+4}:{O+7}], v6, s[24:27], s13 offen offset:{2048*(blk%2)+16}")
        if blk == 1: kb("s_add_u32 s13, s13, 4096")
    kb.label(L_end)
    kb("s_endpgm")
    return kb, dict(name="k1_kernel", vgpr=128, sgpr=40, grid=K1_GRID, block=256, lds=1024)
```

```python
MB = 1 << 20
MODF  = 0
MODB  = 32*1024
NORMS = 64*1024
GBF   = 128*1024
STATS = 256*1024
GBP   = 1*MB
XNF   = 2*MB
WQT   = 6*MB
WKVT  = 8*MB
KVF   = 8*MB + 256*1024
QF    = 9*MB
OF    = 13*MB
WOT   = 17*MB
X2F   = 19*MB
X2GF  = 23*MB
WGUT  = 27*MB
WDT   = 41*MB
HF    = 48*MB
WS_USED = 62*MB
WS_SIZE = 268435456
A_X, A_WQ, A_WK, A_WV, A_WO, B_X, B_WG, B_WU, B_WD, A_C, A_WMOD, A_OUT, A_DBG, A_WS = [8*i for i in range(14)]
```
